```python
import torch

def _softmax(x, axis=-1):
    return torch.softmax(x, dim=axis)
def _gelu(x):
    return torch.nn.functional.gelu(x, approximate="tanh")
def _silu(x):
    return torch.nn.functional.silu(x)
def _sigmoid(x):
    return torch.sigmoid(x)
def _layernorm(x, axis=-1, eps=1e-5):
    m = x.mean(dim=axis, keepdim=True)
    v = x.var(dim=axis, keepdim=True, unbiased=False)
    return (x - m) / torch.sqrt(v + eps)
def _scatter_add(tgt, idx, src, axis=0):
    return tgt.clone().index_add_(axis, idx, src)
def _segment_sum(src, seg, n):
    out = torch.zeros((n,) + src.shape[1:], dtype=src.dtype)
    return out.index_add_(0, seg, src)
def _pad(x, pw):
    flat = tuple(v for pair in reversed(pw) for v in pair)
    return torch.nn.functional.pad(x, flat)

kernel_name = 'interleave_layers__spectral_fnet__glu_gated_glu__prompt'

def setup_inputs():

    _w = (lambda a: (lambda t: t.to(torch.bfloat16) if t.is_floating_point() else t)(torch.as_tensor(a)))
    def _A_setup():
        B, S, D = 1, 2048, 512
        ns = torch.arange(S)[:, None] * torch.arange(S)[None, :]
        nd = torch.arange(D)[:, None] * torch.arange(D)[None, :]
        Ws_re = torch.cos(-2.0 * torch.pi * ns / S).to(float)
        Ws_im = torch.sin(-2.0 * torch.pi * ns / S).to(float)
        Wd_re = torch.cos(-2.0 * torch.pi * nd / D).to(float)
        Wd_im = torch.sin(-2.0 * torch.pi * nd / D).to(float)
        return {
            "x": _w((lambda *s: torch.randn(*s, dtype=torch.bfloat16) * 0.05)(B, S, D)),
            "dft_seq_re": _w(Ws_re),
            "dft_seq_im": _w(Ws_im),
            "dft_hid_re": _w(Wd_re),
            "dft_hid_im": _w(Wd_im),
        }
    _A_in = _A_setup()

    def _B_setup():
        B, S, D, F = 1, 2048, 512, 1792
        return {
            "x": _w((lambda *s: torch.randn(*s, dtype=torch.bfloat16) * 0.05)(B, S, D)),
            "w_gate": _w((lambda *s: torch.randn(*s, dtype=torch.bfloat16) * 1.6)(D, F)),
            "w_up": _w((lambda *s: torch.randn(*s, dtype=torch.bfloat16) * 0.8)(D, F)),
            "w_down": _w((lambda *s: torch.randn(*s, dtype=torch.bfloat16) * 0.8)(F, D)),
        }
    _B_in = _B_setup()

    return {
        "A_x": _A_in["x"],
        "A_dft_seq_re": _A_in["dft_seq_re"],
        "A_dft_seq_im": _A_in["dft_seq_im"],
        "A_dft_hid_re": _A_in["dft_hid_re"],
        "A_dft_hid_im": _A_in["dft_hid_im"],
        "B_x": _B_in["x"],
        "B_w_gate": _B_in["w_gate"],
        "B_w_up": _B_in["w_up"],
        "B_w_down": _B_in["w_down"],
    }

def reference(A_x, A_dft_seq_re, A_dft_seq_im, A_dft_hid_re, A_dft_hid_im, B_x, B_w_gate, B_w_up, B_w_down):
    def _A_ref(x, dft_seq_re, dft_seq_im, dft_hid_re, dft_hid_im):
        a = torch.einsum("bsd,ed->bse", x, dft_hid_re)
        b = torch.einsum("bsd,ed->bse", x, dft_hid_im)
        y = torch.einsum("ts,bse->bte", dft_seq_re, a) - torch.einsum("ts,bse->bte", dft_seq_im, b)
        return y

    def _B_ref(x, w_gate, w_up, w_down):
        g = torch.einsum("bsd,df->bsf", x, w_gate)
        u = torch.einsum("bsd,df->bsf", x, w_up)
        h = _sigmoid(g) * u
        return torch.einsum("bsf,fd->bsd", h, w_down)

    x = A_x
    x = x + _A_ref(_layernorm(x, axis=-1), A_dft_seq_re, A_dft_seq_im, A_dft_hid_re, A_dft_hid_im)
    x = x + _B_ref(_layernorm(x, axis=-1), B_w_gate, B_w_up, B_w_down)
    x = x + _A_ref(_layernorm(x, axis=-1), A_dft_seq_re, A_dft_seq_im, A_dft_hid_re, A_dft_hid_im)
    x = x + _B_ref(_layernorm(x, axis=-1), B_w_gate, B_w_up, B_w_down)
    return x
```

```python
import re

TRANS = ('v_exp_f32', 'v_log_f32', 'v_rcp_f32', 'v_rsq_f32', 'v_sqrt_f32', 'v_sin_f32', 'v_cos_f32')
RMW = ('v_fmac_f32', 'v_dot2c_f32_bf16', 'v_pk_fmac', 'v_writelane_b32')
NODST_S = ('s_cmp', 's_cbranch', 's_branch', 's_waitcnt', 's_barrier', 's_nop', 's_endpgm', 's_sleep',
           's_setprio', 's_bitcmp', 's_setreg', 's_sethalt')


def regs_of(tok):
    tok = tok.strip()
    t = tok.lstrip('-')
    m = re.match(r'^abs\((.*)\)$', t)
    if m:
        t = m.group(1)
    m = re.match(r'^\|(.*)\|$', t)
    if m:
        t = m.group(1)
    m = re.match(r'^([vas])(\d+)$', t)
    if m:
        return {t}
    m = re.match(r'^([vas])\[(\d+):(\d+)\]$', t)
    if m:
        return {f'{m.group(1)}{i}' for i in range(int(m.group(2)), int(m.group(3)) + 1)}
    if t in ('vcc', 'vcc_lo', 'vcc_hi'):
        return {'vcc'}
    if t in ('exec', 'exec_lo', 'exec_hi'):
        return {'exec'}
    if t == 'm0':
        return {'m0'}
    return set()


class Ins:
    def __init__(self, text):
        self.text = text
        body = text.split(';')[0].strip()
        parts = body.split(None, 1)
        self.op = parts[0]
        rest = parts[1] if len(parts) > 1 else ''
        ops, cur, depth = [], '', 0
        for ch in rest:
            if ch in '[(':
                depth += 1
            if ch in '])':
                depth -= 1
            if ch == ',' and depth == 0:
                ops.append(cur.strip())
                cur = ''
            else:
                cur += ch
        if cur.strip():
            ops.append(cur.strip())
        self.mods = ''
        if ops:
            sp = ops[-1].split(None, 1)
            ops[-1] = sp[0]
            if len(sp) > 1:
                self.mods = sp[1]
        self.ops = ops
        op = self.op
        base = re.sub(r'_(e32|e64|dpp|sdwa)$', '', op)
        self.base = base
        self.kind = None
        self.dst, self.src = set(), set()
        self.passes = 0
        self.states = 1
        self.srcC = set()
        self.srcAB = set()
        self.store_data = set()
        self.is_lds_dma = False
        R = [regs_of(o) for o in ops]
        if op.startswith('v_mfma'):
            self.kind = 'mfma'
            self.passes = 8 if '32x32x16' in op else 4 if '16x16x32' in op else None
            assert self.passes, op
            self.dst = R[0]
            self.srcAB = R[1] | R[2]
            self.srcC = R[3]
            self.src = self.srcAB | self.srcC
        elif op.startswith('v_'):
            self.kind = 'valu'
            if base.startswith('v_permlane') and 'swap' in base:
                self.dst = R[0] | R[1]
                self.src = R[0] | R[1]
            elif base in ('v_add_co_u32', 'v_sub_co_u32', 'v_addc_co_u32', 'v_subb_co_u32', 'v_mad_u64_u32'):
                self.dst = R[0] | R[1]
                self.src = set().union(*R[2:])
            elif base == 'v_nop':
                pass
            else:
                self.dst = R[0]
                self.src = set().union(*R[1:]) if len(R) > 1 else set()
                if base in RMW or 'd16' in base:
                    self.src |= R[0]
            self.trans = base in TRANS
            self.dot = base.startswith('v_dot')
            self.dpp = op.endswith('_dpp') or 'quad_perm' in self.mods or 'row_' in self.mods
            self.perml = base.startswith('v_permlane')
            self.rdlane = base in ('v_readfirstlane_b32', 'v_readlane_b32')
            if self.dot:
                self.dotC = R[0] if base == 'v_dot2c_f32_bf16' else R[3]
                self.dotAB = R[1] | R[2]
        elif op.startswith('buffer_') or op.startswith('global_'):
            self.kind = 'vmem'
            allm = ' ' + self.mods + ' '
            if op in ('buffer_wbl2', 'buffer_inv'):
                pass
            elif ('load' in op) and (' lds ' in allm or 'load_lds' in op):
                self.is_lds_dma = True
                self.src = set().union(*R)
            elif 'load' in op:
                self.dst = R[0]
                self.src = set().union(*R[1:])
                if 'd16' in op:
                    self.src |= R[0]
            elif 'atomic' in op and ' sc0 ' in allm:
                self.dst = R[0]
                self.src = set().union(*R)
            else:
                self.src = set().union(*R)
                if 'x3' in op or 'x4' in op:
                    self.store_data = R[0] if op.startswith('buffer_') else R[1]
        elif op.startswith('ds_'):
            self.kind = 'ds'
            if op.startswith('ds_read') or op.startswith('ds_bpermute') or op.startswith('ds_swizzle') or '_rtn' in op:
                self.dst = R[0]
                self.src = set().union(*R[1:])
            else:
                self.src = set().union(*R)
        elif op.startswith('s_'):
            self.kind = 'salu'
            if op == 's_nop':
                self.states = int(ops[0], 0) + 1
            if op.startswith('s_load') or op.startswith('s_memtime') or op.startswith('s_memrealtime') or op.startswith('s_buffer_load'):
                self.kind = 'smem'
                self.dst = R[0]
                self.src = set().union(*R[1:]) if len(R) > 1 else set()
            elif any(op.startswith(p) for p in NODST_S):
                self.src = set().union(*R) if R else set()
            else:
                self.dst = R[0]
                self.src = set().union(*R[1:]) if len(R) > 1 else set()
                if 'saveexec' in op:
                    self.dst = self.dst | {'exec'}
        else:
            raise ValueError('unknown instruction: ' + text)


def isv(r):
    return r[0] in 'va' and r[1:].isdigit()


def need_states(p, c):
    n = 0
    if p.kind == 'valu':
        vd = {r for r in p.dst if isv(r)}
        sd = p.dst - vd
        if c.kind == 'mfma' and vd & c.src:
            n = max(n, 3 if p.dot else 2)
        if c.kind == 'valu':
            if p.trans and not c.trans and vd & c.src:
                n = max(n, 1)
            if (c.dpp or c.perml) and vd & c.src:
                n = max(n, 2)
            if c.rdlane and vd & c.src:
                n = max(n, 1)
            if sd & c.src:
                n = max(n, 4 if c.rdlane else 2)
            if 'exec' in sd:
                n = max(n, 5)
            if p.dot:
                if c.dot and c.base == p.base:
                    if vd & c.dotAB:
                        n = max(n, 3)
                    elif vd & c.dst and not (vd & c.dotC):
                        n = max(n, 3)
                elif vd & (c.src | c.dst):
                    n = max(n, 3)
            if ('sdwa' in p.op and 'dst_sel:DWORD' not in p.mods) and vd & (c.src | c.dst):
                n = max(n, 1)
        if p.dot and c.kind in ('vmem', 'ds') and vd & (c.src | c.dst):
            n = max(n, 3)
        if c.kind == 'vmem' and sd & c.src:
            n = max(n, 5)
        if c.kind == 'mfma' and 'exec' in sd:
            n = max(n, 4)
    elif p.kind == 'mfma':
        big = 12 if p.passes == 8 else 8
        if c.kind == 'mfma':
            if p.dst & c.srcAB:
                n = max(n, big)
            if p.dst & c.srcC:
                if not (p.dst == c.srcC and p.passes == c.passes):
                    n = max(n, big - 2)
            elif p.dst & c.dst:
                n = max(n, big)
        elif c.kind in ('valu', 'vmem', 'ds'):
            if p.dst & (c.src | c.dst):
                n = max(n, big)
            if c.kind == 'valu' and p.srcC & c.dst:
                n = max(n, 7 if p.passes == 8 else 3)
    elif p.kind == 'salu':
        if 'm0' in p.dst and c.kind == 'vmem' and c.is_lds_dma:
            n = max(n, 1)
    elif p.kind == 'vmem':
        if p.store_data & c.dst:
            n = max(n, 2 if c.kind in ('valu', 'mfma') else 1)
    return n


class Prog:
    def __init__(self):
        self.items = []
        self.vm = 0
        self.lg = 0
        self.uid = 0

    def __call__(self, text):
        for line in text.split('\n'):
            s = line.strip()
            if not s or s.startswith(';'):
                if s:
                    self.items.append(('t', '    ' + s))
                continue
            if re.match(r'^[\w.$]+:$', s):
                self.items.append(('l', s[:-1]))
                continue
            if s.startswith('.'):
                self.items.append(('t', s))
                continue
            ins = Ins(s)
            self.items.append(('i', ins))
            if ins.kind == 'vmem' and ins.op not in ('buffer_wbl2', 'buffer_inv'):
                self.vm += 1
            if ins.op in ('buffer_wbl2', 'buffer_inv'):
                self.vm += 1
            if ins.kind == 'ds':
                self.lg += 1
        return self

    def raw(self, text):
        self.items.append(('t', text))

    def label(self, stem='L'):
        self.uid += 1
        return f'{stem}_{self.uid}'

    def vmtok(self):
        return self.vm

    def lgtok(self):
        return self.lg

    def wait(self, vm=None, lg=None):
        parts = []
        if vm is not None:
            parts.append(f'vmcnt({min(63, self.vm - vm)})')
        if lg is not None:
            parts.append(f'lgkmcnt({min(15, self.lg - lg)})')
        self('s_waitcnt ' + ' '.join(parts))

    def render(self):
        out = []
        hists = [[]]
        pending = {}
        nnop = 0
        for kind, it in self.items:
            if kind == 't':
                out.append(it)
                continue
            if kind == 'l':
                out.append(it + ':')
                hists = hists + pending.pop(it, [])
                if not hists:
                    hists = [[]]
                continue
            need = 0
            for h in hists:
                for p, d in h:
                    k = need_states(p, it) - d
                    if k > need:
                        need = k
            if need > 0:
                nnop += 1
                rem = need
                while rem > 0:
                    k = min(rem, 16)
                    out.append(f'    s_nop {k - 1}')
                    rem -= k
                for h in hists:
                    for e in h:
                        e[1] += need
            out.append('    ' + it.text)
            newh = []
            for h in hists:
                h2 = [[p, d + it.states] for p, d in h if d + it.states < 20]
                h2.append([it, 0])
                newh.append(h2)
            hists = newh
            if it.op.startswith('s_cbranch') or it.op == 's_branch':
                tgt = it.ops[0]
                pending.setdefault(tgt, []).extend([[list(e) for e in h] for h in hists])
                if it.op == 's_branch':
                    hists = []
            if it.op == 's_endpgm':
                hists = []
            if len(hists) > 8:
                merged = {}
                for h in hists:
                    for p, d in h:
                        if id(p) not in merged or merged[id(p)][1] > d:
                            merged[id(p)] = [p, d]
                hists = [list(merged.values())]
        self.nnop = nnop
        return '\n'.join(out) + '\n'
```

```python
import sys, os, struct, math
sys.path.insert(0, os.path.dirname(os.path.abspath(__file__)))
from asmlib import Prog

S, D, F = 2048, 512, 1792
WGU = 0x0
WD = 0x380000
CS = 0x540000
G = 0x600000
X1 = 0x900000
X2 = 0xB00000
H = 0xD00000
WS_END = 0x1400000
STAMP = 0x2000000
XBYTES = S * D * 2
WBYTES = D * F * 2

ONES = 0x3f803f80
SEL_LO = 0x00003f80
SEL_HI = 0x3f800000


def f2u(x):
    return struct.unpack('<I', struct.pack('<f', x))[0]


def vr(a, n):
    return f'v[{a}:{a + n - 1}]' if n > 1 else f'v{a}'


class Gen:
    def __init__(self, timing=False):
        self.p = Prog()
        self.timing = timing
        self.launches = []
        self.descs = []

    def entry(self, name, body_label, kidx, pre=''):
        p = self.p
        p.raw(f'.globl {name}\n.p2align 8\n.type {name},@function')
        p(f'{name}:')
        if self.timing:
            p(f's_memrealtime s[90:91]\ns_mov_b32 s94, {kidx}')
        if pre:
            p(pre)
        if body_label:
            p(f's_branch {body_label}')

    def srd(self, r, size):
        self.p(f's_mov_b32 s{r + 2}, {size:#x}\ns_mov_b32 s{r + 3}, 0x20000')

    def finish(self):
        p = self.p
        if self.timing:
            lab = p.label('L_st')
            p(f'''s_waitcnt vmcnt(0) lgkmcnt(0)
            s_barrier
            s_memrealtime s[92:93]
            s_load_dwordx2 s[96:97], s[0:1], 88
            s_waitcnt lgkmcnt(0)
            s_lshl_b32 s95, s94, 12
            s_add_u32 s95, s95, s2
            s_lshl_b32 s95, s95, 3
            s_add_u32 s95, s95, {STAMP:#x}
            v_mov_b32 v1, s95
            v_mov_b32 v2, s90
            v_mov_b32 v3, s92
            s_mov_b64 exec, 1
            s_cmp_lg_u32 s88, 0
            s_cbranch_scc1 {lab}
            global_store_dwordx2 v1, v[2:3], s[96:97]
            {lab}:''')
        p('s_endpgm')

    def desc(self, name, vgpr, sgpr=102, acc=None):
        self.descs.append((name, vgpr, sgpr, acc))

    def transpose8(self, R, O):
        p = self.p
        for c in range(8):
            for i in range(4):
                sel = 's40' if c % 2 == 0 else 's41'
                p(f'v_perm_b32 v{O + 4 * c + i}, v{R + 4 * (2 * i + 1) + c // 2}, v{R + 4 * (2 * i) + c // 2}, {sel}')

    def prep_body(self, wg='s2'):
        p = self.p
        R, O = 8, 40
        Lp2, Lend = p.label('L_prep2'), p.label('L_prepend')
        p(f'''s_load_dwordx4 s[24:27], s[0:1], 48
        s_load_dwordx2 s[28:29], s[0:1], 64
        s_mov_b32 s40, 0x05040100
        s_mov_b32 s41, 0x07060302
        v_and_b32 v1, 63, v0
        s_cmp_ge_u32 {wg}, 112
        s_cbranch_scc1 {Lp2}''')
        p(f'''s_lshr_b32 s30, s88, 1          ; matrix
        s_and_b32 s31, s88, 1
        v_lshrrev_b32 v2, 1, v1
        s_lshl_b32 s32, s31, 5
        v_add_u32 v2, s32, v2             ; kg
        v_and_b32 v3, 1, v1               ; b
        s_movk_i32 s33, {8 * F * 2 // 16}
        v_mul_u32_u24 v4, s33, v2
        v_add_u32 v4, v4, v3
        v_lshlrev_b32 v4, 4, v4           ; kg*8*3584 + b*16
        s_lshl_b32 s34, {wg}, 5             ; T*32 bytes
        s_waitcnt lgkmcnt(0)
        s_cmp_eq_u32 s30, 0
        s_cselect_b32 s12, s24, s26
        s_cselect_b32 s13, s25, s27''')
        self.srd(12, WBYTES)
        for j in range(8):
            p(f's_add_u32 s35, s34, {j * F * 2}\nbuffer_load_dwordx4 {vr(R + 4 * j, 4)}, v4, s[12:15], s35 offen')
        p(f'''v_lshlrev_b32 v5, 9, v2
        v_lshl_add_u32 v5, v3, 6, v5
        s_lshl_b32 s36, s30, 8
        v_add_u32 v5, s36, v5
        s_lshl_b32 s37, {wg}, 15
        s_add_u32 s37, s37, {WGU:#x}
        s_mov_b32 s38, {ONES:#x}
        s_waitcnt vmcnt(0)''')
        self.transpose8(R, O)
        for c in range(8):
            p(f'buffer_store_dwordx4 {vr(O + 4 * c, 4)}, v5, s[8:11], s37 offen offset:{(c & 3) * 16 + (c >> 2) * 128}')
        for i in range(4):
            for c in range(8):
                if i == 0:
                    p(f'v_dot2_f32_bf16 v{R + c}, v{O + 4 * c + i}, s38, 0')
                else:
                    p(f'v_dot2_f32_bf16 v{R + c}, v{O + 4 * c + i}, s38, v{R + c}')
        p(f'''v_lshlrev_b32 v6, 7, v2
        v_lshl_add_u32 v6, v3, 5, v6
        s_lshl_b32 s36, s30, 6
        v_add_u32 v6, s36, v6
        ds_write_b128 v6, {vr(R, 4)}
        ds_write_b128 v6, {vr(R + 4, 4)} offset:16
        v_and_b32 v7, 31, v0              ; col
        v_lshrrev_b32 v20, 5, v0          ; part
        v_lshlrev_b32 v21, 10, v20
        v_lshl_add_u32 v21, v7, 2, v21
        s_waitcnt lgkmcnt(0)
        s_barrier''')
        for j in range(8):
            p(f'ds_read_b32 v{24 + j}, v21 offset:{j * 128}')
        p('s_waitcnt lgkmcnt(0)')
        for j in range(1, 8):
            p(f'v_add_f32 v24, v24, v{24 + j}')
        p(f'''v_lshlrev_b32 v22, 2, v0
        ds_write_b32 v22, v24 offset:8192
        v_lshlrev_b32 v23, 2, v7
        s_waitcnt lgkmcnt(0)
        s_barrier''')
        for j in range(8):
            p(f'ds_read_b32 v{24 + j}, v23 offset:{8192 + j * 128}')
        p('s_waitcnt lgkmcnt(0)')
        for j in range(1, 8):
            p(f'v_add_f32 v24, v24, v{24 + j}')
        p(f'''v_and_b32 v25, 7, v7
        v_bfe_u32 v26, v7, 3, 1
        v_bfe_u32 v27, v7, 4, 1
        v_lshl_add_u32 v25, v26, 4, v25
        v_lshl_add_u32 v25, v27, 3, v25
        v_lshlrev_b32 v25, 2, v25
        s_lshl_b32 s37, {wg}, 7
        s_add_u32 s37, s37, {CS:#x}
        s_cmp_lg_u32 s88, 0
        s_cbranch_scc1 {Lend}
        buffer_store_dword v24, v25, s[8:11], s37 offen
        s_branch {Lend}''')
        p(f'''{Lp2}:
        s_sub_u32 s30, {wg}, 112
        s_lshl_b32 s30, s30, 2
        s_add_u32 s30, s30, s88           ; fg
        s_lshl_b32 s34, s30, 13           ; fg*8*1024
        v_lshlrev_b32 v4, 4, v1
        s_waitcnt lgkmcnt(0)
        s_mov_b32 s12, s28
        s_mov_b32 s13, s29''')
        self.srd(12, WBYTES)
        p('s_add_u32 s35, s34, 4096')
        for j in range(8):
            p(f'buffer_load_dwordx4 {vr(R + 4 * j, 4)}, v4, s[12:15], {"s34" if j < 4 else "s35"} offen offset:{(j & 3) * 1024}')
        p(f'''v_lshrrev_b32 v2, 2, v1           ; ct
        s_mov_b32 s33, {112 * 1024}
        v_mul_lo_u32 v5, s33, v2
        v_bfe_u32 v3, v1, 1, 1
        v_lshl_add_u32 v5, v3, 8, v5
        v_and_b32 v3, 1, v1
        v_lshl_add_u32 v5, v3, 6, v5
        s_lshl_b32 s37, s30, 9
        s_add_u32 s37, s37, {WD:#x}
        s_waitcnt vmcnt(0)''')
        self.transpose8(R, O)
        for c in range(8):
            p(f'buffer_store_dwordx4 {vr(O + 4 * c, 4)}, v5, s[8:11], s37 offen offset:{(c & 3) * 16 + (c >> 2) * 128}')
        p(f'{Lend}:')

    def common_start(self, nwg, Lexit):
        p = self.p
        p(f'''s_cmp_ge_u32 s2, {nwg}
        s_cbranch_scc1 {Lexit}
        s_load_dwordx2 s[8:9], s[0:1], 88
        v_lshrrev_b32 v1, 6, v0
        v_readfirstlane_b32 s88, v1''')
        self.srd(8, WS_END)

    def k_prep(self, kidx):
        p = self.p
        self.entry('prep_kernel', None, kidx)
        Lx = p.label('L_exit')
        self.common_start(168, Lx)
        self.prep_body()
        self.finish()
        p(f'{Lx}:\ns_endpgm')
        self.desc('prep_kernel', 72)

    def sincos_table(self, n, vang, vstep_list, C, Sn, tmp):
        pass

    def alpha_body(self):
        p = self.p
        LZA, LZB, LNA, LNB, LZERO = 0, 4096, 8192, 12288, 16384
        X = 16
        P = 48
        TC, TS = 80, 88
        AC, AS, AN = 96, 104, 112
        CO = 120
        Z = 132
        p(f'''v_and_b32 v1, 63, v0
        v_lshrrev_b32 v2, 3, v1           ; rho
        v_and_b32 v3, 7, v1               ; chi
        s_lshl_b32 s22, s88, 3
        v_add_u32 v4, s22, v2             ; s1
        v_lshlrev_b32 v5, 16, v4
        v_lshl_add_u32 v5, v3, 4, v5      ; voffset
        s_lshl_b32 s23, s20, 10
        s_waitcnt lgkmcnt(0)
        s_add_u32 s12, s12, s4
        s_addc_u32 s13, s13, 0''')
        self.srd(12, XBYTES)
        for i in range(8):
            p(f'buffer_load_dwordx4 {vr(X + 4 * i, 4)}, v5, s[12:15], s23 offen offset:{i * 128}')
        tok_x = p.vmtok()
        p(f'''v_mov_b32 v8, 0
        v_mov_b32 v9, 0
        v_mov_b32 v10, 0
        v_mov_b32 v11, 0
        v_lshlrev_b32 v6, 4, v0
        ds_write_b128 v6, v[8:11] offset:{LZERO}''')
        p(f'''v_and_b32 v12, 15, v1             ; n
        v_lshrrev_b32 v13, 4, v1          ; g
        s_and_b32 s24, s88, 1
        s_lshr_b32 s25, s88, 1
        s_lshl_b32 s25, s25, 2
        s_cmp_eq_u32 s21, 0
        s_cselect_b32 s24, s24, s88
        s_cselect_b32 s25, s25, s21       ; class
        s_lshl_b32 s24, s24, 4
        v_add_u32 v14, s24, v12           ; e'
        v_lshl_add_u32 v15, v14, 3, s25   ; e
        v_cmp_eq_u32 vcc, 0, v15
        v_mov_b32 v6, 256
        v_cndmask_b32 v15, v15, v6, vcc   ; e==0 -> Nyquist''')
        p(f'''s_cmp_eq_u32 s21, 0
        s_cselect_b32 s26, 0, s88
        s_lshr_b32 s26, s26, 1
        s_lshl_b32 s27, s21, 3
        s_add_u32 s27, s27, 8             ; 16+8(c-1)
        s_mul_i32 s28, s26, 24
        s_add_u32 s27, s27, s28
        s_lshl_b32 s28, s25, 1
        s_cmp_eq_u32 s21, 0
        s_cselect_b32 s27, s28, s27
        s_mul_i32 s28, s26, 7
        v_lshrrev_b32 v6, 3, v14          ; j
        v_xor_b32 v6, s28, v6
        v_and_b32 v7, 7, v14
        v_lshl_add_u32 v6, v6, 6, v7
        v_add_u32 v6, s27, v6             ; pos
        v_lshlrev_b32 v6, 2, v6
        v_lshl_add_u32 v7, v13, 18, v6''')
        p(f'''v_cvt_f32_u32 v8, v15
        v_mul_f32 v8, {f2u(1.0 / 512):#x}, v8       ; step
        v_lshlrev_b32 v9, 3, v13
        v_cvt_f32_u32 v9, v9
        v_mul_f32 v9, v9, v8              ; angle(d'=8g)
        v_mul_f32 v10, {f2u(32.0):#x}, v8
        v_add_f32 v10, v10, v9            ; angle(d'=32+8g)''')
        T0 = P
        for k in range(2):
            for j in range(8):
                a = T0 + 16 + j
                if j == 0:
                    p(f'v_fract_f32 v{a}, v{9 + k}')
                else:
                    p(f'v_add_f32 v{9 + k}, v{9 + k}, v8\nv_fract_f32 v{a}, v{9 + k}')
            for j in range(8):
                p(f'v_cos_f32 v{T0 + j}, v{T0 + 16 + j}\nv_sin_f32 v{T0 + 8 + j}, v{T0 + 16 + j}')
            for j in range(4):
                p(f'v_cvt_pk_bf16_f32 v{TC + 4 * k + j}, v{T0 + 2 * j}, v{T0 + 2 * j + 1}')
                p(f'v_cvt_pk_bf16_f32 v{TS + 4 * k + j}, v{T0 + 8 + 2 * j}, v{T0 + 8 + 2 * j + 1}')
        p(f'''v_lshlrev_b32 v9, 8, v13
        v_add_u32 v9, s20, v9             ; s base = 256 g + s2
        v_cvt_f32_u32 v9, v9
        v_cvt_f32_u32 v10, v12
        v_mul_f32 v10, {f2u(1.0 / 2048):#x}, v10    ; m/2048''')
        for T in range(2):
            if T == 0:
                p(f'v_add_f32 v11, {f2u(-16.0 / 2048):#x}, v10')
            else:
                p('v_mov_b32 v11, v10')
            for j in range(8):
                a = T0 + 16 + j
                sj = 64.0 * ((j & 3) + 16 * (j >> 2))
                p(f'v_add_f32 v{a}, {f2u(sj):#x}, v9\nv_mul_f32 v{a}, v{a}, v11\nv_fract_f32 v{a}, v{a}')
            for j in range(8):
                p(f'v_cos_f32 v{T0 + j}, v{T0 + 16 + j}\nv_sin_f32 v{T0 + 8 + j}, v{T0 + 16 + j}')
            for j in range(4):
                p(f'v_cvt_pk_bf16_f32 v{AC + 4 * T + j}, v{T0 + 2 * j}, v{T0 + 2 * j + 1}')
                p(f'v_cvt_pk_bf16_f32 v{AS + 4 * T + j}, v{T0 + 8 + 2 * j}, v{T0 + 8 + 2 * j + 1}')
            for j in range(4):
                p(f'v_xor_b32 v{AN + 4 * T + j}, 0x80008000, v{AS + 4 * T + j}')
        p(f'''v_cvt_f32_u32 v128, s20
        v_mul_f32 v128, {f2u(1.0 / 64):#x}, v128
        v_sin_f32 v129, v128
        v_cos_f32 v128, v128''')
        c = math.sqrt(0.5)
        coefs = {0: ([1, 1, 1, 1], [1, -1, 1, -1], 1), 1: ([1, c, 0, -c], [0, -c, -1, -c], -1),
                 2: ([1, 0, -1, 0], [0, -1, 0, 1], 1), 3: ([1, -c, 0, c], [0, -c, 1, -c], -1)}
        for sl in range(4):
            al, be, sg = coefs[sl]
            vals = [f2u(float(x)) for x in al + be] + [SEL_LO if sg > 0 else 0xbf80, SEL_HI if sg > 0 else 0xbf800000,
                                                     f2u(-8.0) if sl == 0 else 0]
            if sl == 0:
                for i, v in enumerate(vals):
                    p(f's_mov_b32 s{40 + i}, {v:#x}')
            else:
                p(f's_cmp_eq_u32 s21, {sl}')
                for i, v in enumerate(vals):
                    p(f's_cselect_b32 s{40 + i}, {v:#x}, s{40 + i}')
        p(f'''s_and_b32 s24, s88, 1
        s_lshl_b32 s24, s24, 3
        v_add_u32 v8, s24, v2
        v_xor_b32 v8, v8, v3
        v_lshlrev_b32 v8, 4, v8
        v_lshl_add_u32 v8, v3, 8, v8
        s_lshr_b32 s24, s88, 1
        s_lshl_b32 s24, s24, 11
        v_add_u32 v8, s24, v8''')
        p(f'''v_xor_b32 v9, v12, v13
        v_lshlrev_b32 v9, 4, v9
        v_lshl_add_u32 v9, v13, 8, v9     ; kappa 0
        v_xor_b32 v10, 64, v9             ; kappa 1 (n ^ 4)''')
        p(f'''s_lshr_b32 s24, s88, 1
        s_lshl_b32 s24, s24, 12
        s_movk_i32 s25, {LZB}
        s_cmp_eq_u32 s21, 0
        s_cselect_b32 s24, s24, 0         ; P base
        s_cselect_b32 s25, {LZERO}, s25     ; Q base
        s_add_u32 s26, s24, {LNA}           ; R base
        v_add_u32 v140, s24, v9
        v_add_u32 v141, s24, v10
        v_add_u32 v142, s25, v9
        v_add_u32 v143, s25, v10
        v_add_u32 v144, s26, v9
        v_add_u32 v145, s26, v10
        s_mov_b32 s30, {ONES:#x}
        s_mov_b32 s31, {SEL_LO:#x}
        s_mov_b32 s32, {SEL_HI:#x}''')
        p.wait(vm=tok_x)
        SU, SQ = 146, 150
        for i in range(8):
            for jj in range(4):
                x = X + 4 * i + jj
                p(f'v_dot2_f32_bf16 v{SU + jj}, v{x}, s30, {"0" if i == 0 else f"v{SU + jj}"}')
            for jj in range(4):
                x = X + 4 * i + jj
                p(f'v_dot2_f32_bf16 v{SQ + jj}, v{x}, v{x}, {"0" if i == 0 else f"v{SQ + jj}"}')
        red = [f'v_add_f32 v{SU}, v{SU}, v{SU + 1}', f'v_add_f32 v{SU + 2}, v{SU + 2}, v{SU + 3}',
               f'v_add_f32 v{SQ}, v{SQ}, v{SQ + 1}', f'v_add_f32 v{SQ + 2}, v{SQ + 2}, v{SQ + 3}',
               f'v_add_f32 v{SU}, v{SU}, v{SU + 2}', f'v_add_f32 v{SQ}, v{SQ}, v{SQ + 2}']
        for m in ('quad_perm:[1,0,3,2]', 'quad_perm:[2,3,0,1]', 'row_half_mirror'):
            red += [f'v_add_f32_dpp v{SU}, v{SU}, v{SU} {m} row_mask:0xf bank_mask:0xf',
                    f'v_add_f32_dpp v{SQ}, v{SQ}, v{SQ} {m} row_mask:0xf bank_mask:0xf']
        red += [f'v_mul_f32 v{SU}, {f2u(1.0 / 512):#x}, v{SU}',
                f'v_mul_f32 v{SQ}, {f2u(1.0 / 512):#x}, v{SQ}',
                f'v_fma_f32 v{SQ}, -v{SU}, v{SU}, v{SQ}',
                f'v_max_f32 v{SQ}, 0, v{SQ}',
                f'v_add_f32 v{SQ}, {f2u(1e-5):#x}, v{SQ}',
                f'v_rsq_f32 v{SQ}, v{SQ}',
                f'v_mul_f32 v{SU}, s50, v{SU}']
        red += [f'v_mul_f32 v{SU}, v{SU}, v{SQ}']
        red += [f'v_mul_f32 v{CO + i}, s{40 + i}, v{SQ}' for i in range(8)]
        dots = []
        for jj in range(4):
            for k in range(4):
                dots.append(f'v_dot2_f32_bf16 v{P + 8 * jj + 2 * k}, v{X + 4 * k + jj}, s31, 0')
                dots.append(f'v_dot2_f32_bf16 v{P + 8 * jj + 2 * k + 1}, v{X + 4 * k + jj}, s32, 0')
            for k in range(4):
                dots.append(f'v_dot2_f32_bf16 v{P + 8 * jj + 2 * k}, v{X + 4 * (k + 4) + jj}, s48, v{P + 8 * jj + 2 * k}')
                dots.append(f'v_dot2_f32_bf16 v{P + 8 * jj + 2 * k + 1}, v{X + 4 * (k + 4) + jj}, s49, v{P + 8 * jj + 2 * k + 1}')
        ri = 0
        for di, d in enumerate(dots):
            p(d)
            if di >= 3 and di % 2 == 1 and ri < len(red):
                p(red[ri]); ri += 1
        while ri < len(red):
            p(red[ri]); ri += 1
        p(f'v_mov_b32 v{SU + 1}, v{SU}')
        def bc(i):
            r = CO + (i & ~1)
            if i % 2 == 0:
                return f'v[{r}:{r + 1}]', 'op_sel:[0,0,0] op_sel_hi:[1,0,1]', 'op_sel:[0,0] op_sel_hi:[1,0]'
            return f'v[{r}:{r + 1}]', 'op_sel:[0,1,0] op_sel_hi:[1,1,1]', 'op_sel:[0,1] op_sel_hi:[1,1]'
        for k in range(4):
            for jj in range(4):
                pr = f'v[{P + 8 * jj + 2 * k}:{P + 8 * jj + 2 * k + 1}]'
                za = f'v[{X + 2 * jj}:{X + 2 * jj + 1}]'
                zb = f'v[{X + 8 + 2 * jj}:{X + 8 + 2 * jj + 1}]'
                cr, m3, m2 = bc(k)
                p(f'v_pk_fma_f32 {za}, {pr}, {cr}, {f"v[{SU}:{SU + 1}]" if k == 0 else za} {m3}')
                cr, m3, m2 = bc(4 + k)
                if k == 0:
                    p(f'v_pk_mul_f32 {zb}, {pr}, {cr} {m2}')
                else:
                    p(f'v_pk_fma_f32 {zb}, {pr}, {cr}, {zb} {m3}')
        ZA_, ZB_, NA_, NB_ = X + 16, X + 20, X + 24, X + 28
        for jj in range(4):
            p(f'v_cvt_pk_bf16_f32 v{ZA_ + jj}, v{X + 2 * jj}, v{X + 2 * jj + 1}')
            p(f'v_cvt_pk_bf16_f32 v{ZB_ + jj}, v{X + 8 + 2 * jj}, v{X + 8 + 2 * jj + 1}')
        p(f'ds_write_b128 v8, {vr(ZA_, 4)} offset:{LZA}\nds_write_b128 v8, {vr(ZB_, 4)} offset:{LZB}')
        for jj in range(4):
            p(f'v_xor_b32 v{NA_ + jj}, 0x80008000, v{ZA_ + jj}\nv_xor_b32 v{NB_ + jj}, 0x80008000, v{ZB_ + jj}')
        p(f'''ds_write_b128 v8, {vr(NA_, 4)} offset:{LNA}
        ds_write_b128 v8, {vr(NB_, 4)} offset:{LNB}
        s_waitcnt lgkmcnt(0)
        s_barrier''')
        def fr(st, half, k):
            i = (st * 2 + half) * 2 + k
            return (P + 4 * i) if i < 8 else (X + 4 * (i - 8))
        toks = {}
        for half in range(2):
            for k in range(2):
                for st in range(3):
                    p(f'ds_read_b128 {vr(fr(st, half, k), 4)}, v{140 + 2 * st + k} offset:{half * 2048 + k * 1024}')
                toks[(half, k)] = p.lgtok()
        DRE, DIM = 154, 162
        for half in range(2):
            for k in range(2):
                p.wait(lg=toks[(half, k)])
                re, im = vr(DRE + 4 * half, 4), vr(DIM + 4 * half, 4)
                p(f'v_mfma_f32_16x16x32_bf16 {re}, {vr(fr(0, half, k), 4)}, {vr(TC + 4 * k, 4)}, {"0" if k == 0 else re}')
                p(f'v_mfma_f32_16x16x32_bf16 {im}, {vr(fr(1, half, k), 4)}, {vr(TC + 4 * k, 4)}, {"0" if k == 0 else im}')
                p(f'v_mfma_f32_16x16x32_bf16 {re}, {vr(fr(1, half, k), 4)}, {vr(TS + 4 * k, 4)}, {re}')
                p(f'v_mfma_f32_16x16x32_bf16 {im}, {vr(fr(2, half, k), 4)}, {vr(TS + 4 * k, 4)}, {im}')
        BRE, BIM = X + 16, X + 20
        for half in range(2):
            for i in range(2):
                p(f'v_cvt_pk_bf16_f32 v{BRE + 2 * half + i}, v{DRE + 4 * half + 2 * i}, v{DRE + 4 * half + 2 * i + 1}')
                p(f'v_cvt_pk_bf16_f32 v{BIM + 2 * half + i}, v{DIM + 4 * half + 2 * i}, v{DIM + 4 * half + 2 * i + 1}')
        GRE, GIM = P, P + 8
        for T in range(2):
            p(f'v_mfma_f32_16x16x32_bf16 {vr(GRE + 4 * T, 4)}, {vr(AC + 4 * T, 4)}, {vr(BRE, 4)}, 0')
            p(f'v_mfma_f32_16x16x32_bf16 {vr(GIM + 4 * T, 4)}, {vr(AC + 4 * T, 4)}, {vr(BIM, 4)}, 0')
        for T in range(2):
            p(f'v_mfma_f32_16x16x32_bf16 {vr(GRE + 4 * T, 4)}, {vr(AS + 4 * T, 4)}, {vr(BIM, 4)}, {vr(GRE + 4 * T, 4)}')
            p(f'v_mfma_f32_16x16x32_bf16 {vr(GIM + 4 * T, 4)}, {vr(AN + 4 * T, 4)}, {vr(BRE, 4)}, {vr(GIM + 4 * T, 4)}')
        p(f's_add_u32 s23, s23, {G:#x}')
        O = P + 16
        for T in range(2):
            for r in range(4):
                p(f'v_cvt_pk_bf16_f32 v{O + 4 * T + r}, v{GRE + 4 * T + r}, v{GIM + 4 * T + r}')
                p(f's_add_u32 s24, s23, {(16 * T + r) * 65536}')
                p(f'buffer_store_dword v{O + 4 * T + r}, v7, s[8:11], s24 offen')
        p(f'''v_mul_f32 v{O + 8}, v{GRE}, v128
        v_mul_f32 v{O + 9}, v{GIM}, v128
        v_fmac_f32 v{O + 8}, v{GIM}, v129
        v_fma_f32 v{O + 9}, -v{GRE}, v129, v{O + 9}
        v_cvt_pk_bf16_f32 v{O + 8}, v{O + 8}, v{O + 9}
        s_add_u32 s24, s23, {32 * 65536}
        s_mov_b64 exec, 0xffff
        buffer_store_dword v{O + 8}, v7, s[8:11], s24 offen
        s_mov_b64 exec, -1''')

    def k_alpha(self, kidxs):
        p = self.p
        Lb, Lx = 'L_alpha_body', p.label('L_exit')
        self.entry('alpha1_kernel', Lb, kidxs[0], 's_load_dwordx2 s[12:13], s[0:1], 0\ns_mov_b32 s4, 0')
        self.entry('alpha2_kernel', None, kidxs[1], f's_load_dwordx2 s[12:13], s[0:1], 88\ns_mov_b32 s4, {X2:#x}')
        p(f'{Lb}:')
        self.common_start(256, Lx)
        p('''s_and_b32 s20, s2, 7
        s_lshr_b32 s21, s2, 5
        s_lshl_b32 s21, s21, 3
        s_add_u32 s20, s20, s21           ; s2 index
        s_bfe_u32 s21, s2, 0x20003        ; slot''')
        self.alpha_body()
        self.finish()
        p(f'{Lx}:\ns_endpgm')
        self.desc('alpha1_kernel', 176)
        self.desc('alpha2_kernel', 176)

    def beta_body(self):
        p = self.p
        A, B, ACC, RES = 16, 48, 80, 96
        p(f'''v_and_b32 v1, 63, v0
        v_and_b32 v2, 31, v1              ; m / n
        v_lshrrev_b32 v3, 5, v1           ; h
        s_and_b32 s22, s88, 1             ; cw
        s_lshr_b32 s23, s88, 1            ; tw
        s_lshl_b32 s24, s21, 1
        s_add_u32 s24, s24, s22
        s_lshl_b32 s25, s24, 5
        v_and_b32 v4, 0x13, v2
        v_bfe_u32 v5, v2, 2, 1
        v_lshl_or_b32 v4, v5, 3, v4
        v_bfe_u32 v5, v2, 3, 1
        v_lshl_or_b32 v4, v5, 2, v4
        v_add_u32 v4, s25, v4             ; col
        v_and_b32 v5, 7, v4               ; class
        v_and_b32 v6, 3, v4
        v_cmp_eq_u32 s[30:31], 0, v6
        v_cmp_lt_u32 s[32:33], 4, v5
        v_mov_b32 v6, 256
        v_cmp_gt_u32 vcc, v4, v6
        s_and_b64 s[34:35], s[30:31], vcc
        s_or_b64 s[32:33], s[32:33], s[34:35]
        v_sub_u32 v6, 512, v4
        v_cndmask_b32 v6, v4, v6, s[32:33]      ; e (0..511; class 0..4)
        v_and_b32 v5, 7, v6
        v_lshrrev_b32 v7, 3, v6           ; e'
        v_and_b32 v7, 0x3f, v7
        v_and_b32 v8, 31, v7
        v_cndmask_b32 v7, v7, v8, s[30:31]      ; classes 0,4: e' &= 31
        v_lshrrev_b32 v8, 3, v7           ; j
        v_cmp_lt_u32 vcc, 3, v8
        v_xor_b32 v9, 7, v8
        v_cndmask_b32 v8, v8, v9, vcc     ; pair p
        v_lshlrev_b32 v9, 3, v5
        v_add_u32 v9, 8, v9               ; 16+8(c-1)
        v_add_u32 v10, 24, v9
        v_cndmask_b32 v9, v9, v10, vcc
        v_lshlrev_b32 v10, 1, v5
        v_cndmask_b32 v9, v9, v10, s[30:31]
        v_and_b32 v10, 7, v7
        v_lshl_add_u32 v10, v8, 6, v10
        v_add_u32 v10, v10, v9            ; pos
        s_sub_u32 s26, 32, s20
        v_mov_b32 v8, s20
        v_mov_b32 v9, s26
        v_cndmask_b32 v8, v8, v9, s[32:33]
        v_lshlrev_b32 v8, 16, v8
        v_lshl_add_u32 v8, v10, 2, v8
        v_lshl_add_u32 v8, v3, 12, v8     ; + 4h*1024
        v_cmp_eq_u32 vcc, 0, v4
        v_mov_b32 v9, 0x7f000000
        v_cndmask_b32 v8, v8, v9, vcc
        v_mov_b32 v9, 0x80000000
        v_cndmask_b32 v14, 0, v9, s[32:33]
        s_waitcnt lgkmcnt(0)''')
        toks = []
        for k in range(8):
            p(f's_mov_b32 s27, {G + k * 8192:#x}')
            for i in range(4):
                p(f'buffer_load_dword v{A + 4 * k + i}, v8, s[8:11], s27 offen offset:{i * 1024}')
            toks.append(p.vmtok())
        p(f'''s_add_u32 s12, s12, s4
        s_addc_u32 s13, s13, 0''')
        self.srd(12, XBYTES)
        p(f'''s_lshl_b32 s26, s23, 5
        v_add_u32 v11, s26, v2            ; t2
        v_lshlrev_b32 v12, 5, v11
        s_add_u32 s27, s20, 2032          ; t1 + 2048
        v_add_u32 v12, s27, v12
        v_and_b32 v12, 2047, v12
        v_lshlrev_b32 v12, 10, v12
        v_lshl_add_u32 v12, v3, 4, v12
        s_lshl_b32 s27, s24, 6
        buffer_load_dwordx4 {vr(RES, 4)}, v12, s[12:15], s27 offen
        buffer_load_dwordx4 {vr(RES + 4, 4)}, v12, s[12:15], s27 offen offset:32''')
        tok_res = p.vmtok()
        T0 = 104
        p(f'''v_cvt_f32_u32 v11, v11
        v_mul_f32 v11, {f2u(1.0 / 64):#x}, v11      ; step
        v_lshlrev_b32 v13, 2, v3
        v_cvt_f32_u32 v13, v13
        v_mul_f32 v13, v13, v11           ; angle(s2=4h)
        v_mul_f32 v15, {f2u(5.0):#x}, v11''')
        for k in range(8):
            for i in range(4):
                if not (k == 0 and i == 0):
                    p(f'v_add_f32 v13, v13, v{15 if i == 0 else 11}')
                p(f'v_fract_f32 v{T0 + i}, v13')
            for i in range(4):
                p(f'v_cos_f32 v{T0 + 4 + i}, v{T0 + i}\nv_sin_f32 v{T0 + 8 + i}, v{T0 + i}')
            for i in range(4):
                p(f'v_cvt_pk_bf16_f32 v{B + 4 * k + i}, v{T0 + 4 + i}, v{T0 + 8 + i}')
        p(f'''s_mov_b32 s31, {SEL_LO:#x}
        s_mov_b32 s32, {SEL_HI:#x}
        s_lshl_b32 s26, s20, 1
        s_add_u32 s26, s26, s23
        s_lshl_b32 s26, s26, 15
        s_lshl_b32 s27, s24, 11
        s_add_u32 s26, s26, s27
        s_add_u32 s26, s26, {X1:#x}
        v_lshlrev_b32 v13, 4, v1''')
        for k in range(8):
            p.wait(vm=toks[k])
            for i in range(4):
                p(f'v_xor_b32 v{A + 4 * k + i}, v14, v{A + 4 * k + i}')
            p(f'v_mfma_f32_32x32x16_bf16 {vr(ACC, 16)}, {vr(A + 4 * k, 4)}, {vr(B + 4 * k, 4)}, {"0" if k == 0 else vr(ACC, 16)}')
        p.wait(vm=tok_res)
        for i in range(8):
            p(f'v_dot2c_f32_bf16 v{ACC + 2 * i}, s31, v{RES + i}\nv_dot2c_f32_bf16 v{ACC + 2 * i + 1}, s32, v{RES + i}')
        for i in range(8):
            p(f'v_cvt_pk_bf16_f32 v{A + i}, v{ACC + 2 * i}, v{ACC + 2 * i + 1}')
        p(f'''buffer_store_dwordx4 {vr(A, 4)}, v13, s[8:11], s26 offen
        buffer_store_dwordx4 {vr(A + 4, 4)}, v13, s[8:11], s26 offen offset:1024''')

    def k_beta(self, kidxs):
        p = self.p
        Lb, Lx = 'L_beta_body', p.label('L_exit')
        self.entry('beta1_kernel', Lb, kidxs[0], 's_load_dwordx2 s[12:13], s[0:1], 0\ns_mov_b32 s4, 0')
        self.entry('beta2_kernel', None, kidxs[1], f's_load_dwordx2 s[12:13], s[0:1], 88\ns_mov_b32 s4, {X2:#x}')
        p(f'{Lb}:')
        self.common_start(256, Lx)
        p('''s_and_b32 s22, s2, 7
        s_bfe_u32 s21, s2, 0x30003        ; J
        s_bfe_u32 s23, s2, 0x10007
        s_lshl_b32 s23, s23, 3
        s_add_u32 s22, s22, s23           ; a in 0..15
        s_sub_u32 s23, 32, s22
        s_cmp_eq_u32 s22, 0
        s_cselect_b32 s23, 16, s23
        s_bitcmp1_b32 s2, 6
        s_cselect_b32 s20, s23, s22''')
        self.beta_body()
        self.finish()
        p(f'{Lx}:\ns_endpgm')
        self.desc('beta1_kernel', 120)
        self.desc('beta2_kernel', 120)

    def gu_body(self, NS=5):
        p = self.p
        B = 128
        ACC = [16, 32]
        AR = 48
        NR = 6
        CSR = 72
        TMP = 88
        HO = 112
        SU, SQ = 120, 124
        VMU, VRG, VR_ = 8, 9, 10
        p(f'''v_and_b32 v1, 63, v0
        v_lshlrev_b32 v2, 4, v1           ; lane*16
        v_add_u32 v3, 0x10000, v2
        v_add_u32 v4, 0x20000, v2
        v_lshrrev_b32 v5, 5, v1
        v_lshlrev_b32 v5, 6, v5           ; h*64
        s_lshl_b32 s22, s20, 2
        s_add_u32 s22, s22, s88
        s_lshl_b32 s23, s22, 15
        s_add_u32 s23, s23, {X1:#x}
        s_mul_i32 s24, s21, 7
        s_lshl_b32 s25, s24, 15
        s_lshl_b32 s26, s88, 13
        s_add_u32 s25, s25, s26
        s_mul_i32 s27, s22, 112
        s_add_u32 s27, s27, s24
        s_lshl_b32 s27, s27, 10
        s_add_u32 s27, s27, {H:#x}
        s_lshl_b32 s28, s24, 7
        s_add_u32 s28, s28, {CS:#x}
        s_mov_b32 s30, {ONES:#x}
        s_waitcnt lgkmcnt(0)''')
        tokA = {}

        def dma(j, half):
            slot = j % NS
            p(f's_add_u32 m0, s26, {slot * 32768 + half * 4096}')
            p(f's_add_u32 s29, s25, {WGU + j * 32768 + half * 4096}')
            for i in range(4):
                p(f'buffer_load_dwordx4 v2, s[8:11], s29 offen offset:{i * 1024} lds')
            if half == 1:
                tokA[j] = p.vmtok()
        tokB = []

        def loadB(k):
            if k % 4 == 0:
                p(f's_add_u32 s31, s23, {k * 1024}')
            p(f'buffer_load_dwordx4 {vr(B + 4 * k, 4)}, v2, s[8:11], s31 offen offset:{(k % 4) * 1024}')
            tokB.append(p.vmtok())
        dma(0, 0); dma(0, 1)
        for k in range(32):
            loadB(k)
        dma(1, 0); dma(1, 1); dma(2, 0); dma(2, 1)
        late = [(j, hf) for j in range(3, NS) for hf in range(2)]

        def rd(g):
            j, k = divmod(g, 32)
            off = (j % NS) * 32768 + k * 1024
            base = ['v2', 'v3', 'v4'][off >> 16]
            p(f'ds_read_b128 {vr(AR + 4 * (g % NR), 4)}, {base} offset:{off & 0xffff}')
            tokR[g] = p.lgtok()
        tokR = {}
        tokCS = {}

        def loadCS(j):
            for i in range(4):
                p(f'buffer_load_dwordx4 {vr(CSR + 4 * i, 4)}, v5, s[8:11], s28 offen offset:{j * 128 + i * 16}')
            tokCS[j] = p.vmtok()

        def epilogue(j):
            a = ACC[j & 1]
            L = []
            L.append(('wait_cs', j))
            for r in range(16):
                L.append(f'v_fma_f32 v{a + r}, -v{VMU}, v{CSR + r}, v{a + r}')
            if j + 1 < 7:
                L.append(('load_cs', j + 1))
            for r in range(8):
                L.append(f'v_mul_f32 v{a + r}, v{a + r}, v{VRG}')
            for r in range(8):
                L.append(f'v_exp_f32 v{a + r}, v{a + r}')
                L.append(f'v_mul_f32 v{a + 8 + r}, v{a + 8 + r}, v{VR_}')
            for r in range(8):
                L.append(f'v_add_f32 v{a + r}, 1.0, v{a + r}')
            for r in range(8):
                L.append(f'v_rcp_f32 v{a + r}, v{a + r}')
            for r in range(8):
                L.append(f'v_mul_f32 v{a + r}, v{a + r}, v{a + 8 + r}')
            ho = HO + 4 * (j & 1)
            for i in range(4):
                L.append(f'v_cvt_pk_bf16_f32 v{ho + i}, v{a + 2 * i}, v{a + 2 * i + 1}')
            L.append(f's_add_u32 s31, s27, {j * 1024}')
            L.append(f'buffer_store_dwordx4 {vr(ho, 4)}, v2, s[8:11], s31 offen')
            return L

        def emit(x):
            if isinstance(x, tuple):
                if x[0] == 'wait_cs':
                    p.wait(vm=tokCS[x[1]])
                elif x[0] == 'load_cs':
                    loadCS(x[1])
                elif x[0] == 'dma':
                    dma(x[1], x[2])
            else:
                p(x)

        def stats_fin():
            L = [f'v_add_f32 v{SU}, v{SU}, v{SU + 1}', f'v_add_f32 v{SU + 2}, v{SU + 2}, v{SU + 3}',
                 f'v_add_f32 v{SQ}, v{SQ}, v{SQ + 1}', f'v_add_f32 v{SQ + 2}, v{SQ + 2}, v{SQ + 3}',
                 f'v_add_f32 v{SU}, v{SU}, v{SU + 2}', f'v_add_f32 v{SQ}, v{SQ}, v{SQ + 2}',
                 f'v_mov_b32 v{SU + 1}, v{SU}', f'v_mov_b32 v{SQ + 1}, v{SQ}',
                 f'v_permlane32_swap_b32 v{SU}, v{SU + 1}', f'v_permlane32_swap_b32 v{SQ}, v{SQ + 1}',
                 f'v_add_f32 v{SU}, v{SU}, v{SU + 1}', f'v_add_f32 v{SQ}, v{SQ}, v{SQ + 1}',
                 f'v_mul_f32 v{VMU}, {f2u(1.0 / 512):#x}, v{SU}',
                 f'v_mul_f32 v{SQ}, {f2u(1.0 / 512):#x}, v{SQ}',
                 f'v_fma_f32 v{SQ}, -v{VMU}, v{VMU}, v{SQ}',
                 f'v_max_f32 v{SQ}, 0, v{SQ}',
                 f'v_add_f32 v{SQ}, {f2u(1e-5):#x}, v{SQ}',
                 f'v_rsq_f32 v{VR_}, v{SQ}',
                 's_nop 0',
                 f'v_mul_f32 v{VRG}, {f2u(-math.log2(math.e)):#x}, v{VR_}']
            return L
        p.wait(vm=tokA[0])
        p('s_barrier')
        PF = NR - 1
        for g in range(PF):
            rd(g)
        total = 7 * 32
        fill = []
        for g in range(total):
            j, k = divmod(g, 32)
            if k == 0:
                assert not fill, (j, len(fill))
                if j == 0:
                    fill = []
                else:
                    fill = (stats_fin() if j == 1 else []) + epilogue(j - 1)
            if k == 32 - PF - 1 and j + 1 < 7:
                p.wait(vm=tokA[j + 1])
                p('s_barrier')
                if j >= 1 and j - 1 + NS < 7:
                    fill += [('dma', j - 1 + NS, 0), ('dma', j - 1 + NS, 1)]
            if j == 0:
                p.wait(vm=tokB[k], lg=tokR[g])
            else:
                p.wait(lg=tokR[g])
            a = vr(ACC[j & 1], 16)
            p(f'v_mfma_f32_32x32x16_bf16 {a}, {vr(AR + 4 * (g % NR), 4)}, {vr(B + 4 * k, 4)}, {"0" if k == 0 else a}')
            if g + PF < total:
                rd(g + PF)
            if j == 0:
                for i in range(4):
                    x = B + 4 * k + i
                    p(f'v_dot2_f32_bf16 v{SU + i}, v{x}, s30, {"0" if k == 0 else f"v{SU + i}"}')
                    p(f'v_dot2_f32_bf16 v{SQ + i}, v{x}, v{x}, {"0" if k == 0 else f"v{SQ + i}"}')
                if late and k % 4 == 3:
                    dma(*late.pop(0))
                if k == 20:
                    loadCS(0)
            elif k >= 2:
                n = 4 if k < 31 else len(fill)
                for _ in range(min(n, len(fill))):
                    emit(fill.pop(0))
        for x in epilogue(6):
            emit(x)

    def k_gu(self, kidxs):
        p = self.p
        Lb, Lx = 'L_gu_body', p.label('L_exit')
        if self.timing:
            self.entry('gu1_kernel', Lb, kidxs[0])
            self.entry('gu2_kernel', None, kidxs[1])
            self.desc('gu2_kernel', 256)
        else:
            self.entry('gu1_kernel', None, kidxs[0])
        p(f'{Lb}:')
        self.common_start(256, Lx)
        p('''s_and_b32 s20, s2, 1
        s_lshl_b32 s20, s20, 3
        s_bfe_u32 s22, s2, 0x30003
        s_add_u32 s20, s20, s22           ; mb
        s_bfe_u32 s21, s2, 0x20001
        s_lshl_b32 s21, s21, 2
        s_lshr_b32 s22, s2, 6
        s_add_u32 s21, s21, s22           ; nb''')
        self.gu_body()
        self.finish()
        p(f'{Lx}:\ns_endpgm')
        self.desc('gu1_kernel', 256)

    def down_body(self, NS=9):
        p = self.p
        ACC, RES = 16, 32
        FR = [40, 72]
        NST = 28
        p(f'''v_and_b32 v1, 63, v0
        v_lshlrev_b32 v2, 4, v1           ; lane*16
        s_and_b32 s22, s88, 1
        s_lshr_b32 s23, s88, 1
        s_mov_b32 s25, {H:#x}
        s_cmp_eq_u32 s23, 0
        s_cselect_b32 s24, s21, s20
        s_cselect_b32 s25, {WD:#x}, s25
        s_lshl_b32 s24, s24, 1
        s_add_u32 s24, s24, s22
        s_mul_i32 s24, s24, {112 * 1024}
        s_add_u32 s25, s25, s24
        s_lshl_b32 s26, s88, 12
        s_lshl_b32 s27, s22, 12
        s_lshl_b32 s28, s23, 12
        s_add_u32 s28, s28, 8192
        v_add_u32 v3, s27, v2
        v_add_u32 v4, s28, v2
        v_add_u32 v5, 0x10000, v3
        v_add_u32 v6, 0x10000, v4
        v_add_u32 v7, 0x20000, v3
        v_add_u32 v8, 0x20000, v4
        s_waitcnt lgkmcnt(0)''')
        tokD = {}

        def dma(i):
            p(f's_add_u32 m0, s26, {(i % NS) * 16384}')
            p(f's_add_u32 s29, s25, {i * 4096}')
            for q in range(4):
                p(f'buffer_load_dwordx4 v2, s[8:11], s29 offen offset:{q * 1024} lds')
            tokD[i] = p.vmtok()
        for i in range(NS):
            dma(i)
        p(f'''s_lshl_b32 s30, s20, 1
        s_add_u32 s30, s30, s23
        s_lshl_b32 s31, s21, 1
        s_add_u32 s31, s31, s22
        s_lshl_b32 s32, s30, 15
        s_lshl_b32 s33, s31, 11
        s_add_u32 s32, s32, s33
        s_add_u32 s32, s32, {X1:#x}
        buffer_load_dwordx4 {vr(RES, 4)}, v2, s[8:11], s32 offen
        buffer_load_dwordx4 {vr(RES + 4, 4)}, v2, s[8:11], s32 offen offset:1024
        s_add_u32 s12, s12, s4
        s_addc_u32 s13, s13, 0''')
        tok_res = p.vmtok()
        self.srd(12, XBYTES)
        p(f'''v_and_b32 v9, 31, v1
        s_lshl_b32 s34, s23, 10
        s_add_u32 s34, s34, s20
        s_add_u32 s34, s34, 2032
        v_lshlrev_b32 v9, 5, v9
        v_add_u32 v9, s34, v9
        v_and_b32 v9, 2047, v9
        v_lshlrev_b32 v9, 10, v9
        v_lshrrev_b32 v10, 5, v1
        v_lshl_add_u32 v9, v10, 4, v9
        s_lshl_b32 s35, s31, 6
        s_mov_b32 s36, {SEL_LO:#x}
        s_mov_b32 s37, {SEL_HI:#x}''')
        tokR = {}

        def rds(i):
            off0 = (i % NS) * 16384
            for q in range(4):
                off = off0 + q * 1024
                p(f'ds_read_b128 {vr(FR[i & 1] + 4 * q, 4)}, v{3 + 2 * (off >> 16)} offset:{off & 0xffff}')
                p(f'ds_read_b128 {vr(FR[i & 1] + 16 + 4 * q, 4)}, v{4 + 2 * (off >> 16)} offset:{off & 0xffff}')
                tokR[(i, q)] = p.lgtok()
        p.wait(vm=tokD[0])
        p('s_barrier')
        rds(0)
        a = vr(ACC, 16)
        for i in range(NST):
            if i + 1 < NST:
                p.wait(vm=tokD[i + 1], lg=tokR[(i, 3)])
                p('s_barrier')
                rds(i + 1)
                if i + NS < NST:
                    dma(i + NS)
            for q in range(4):
                if i + 1 == NST:
                    p.wait(lg=tokR[(i, q)])
                p(f'v_mfma_f32_32x32x16_bf16 {a}, {vr(FR[i & 1] + 4 * q, 4)}, {vr(FR[i & 1] + 16 + 4 * q, 4)}, {"0" if i == 0 and q == 0 else a}')
        p.wait(vm=tok_res)
        for i in range(8):
            p(f'v_dot2c_f32_bf16 v{ACC + 2 * i}, s36, v{RES + i}\nv_dot2c_f32_bf16 v{ACC + 2 * i + 1}, s37, v{RES + i}')
        for i in range(8):
            p(f'v_cvt_pk_bf16_f32 v{FR[0] + i}, v{ACC + 2 * i}, v{ACC + 2 * i + 1}')
        p(f'''buffer_store_dwordx4 {vr(FR[0], 4)}, v9, s[12:15], s35 offen
        buffer_store_dwordx4 {vr(FR[0] + 4, 4)}, v9, s[12:15], s35 offen offset:32''')

    def k_down(self, kidxs):
        p = self.p
        Lb, Lx = 'L_down_body', p.label('L_exit')
        self.entry('down1_kernel', Lb, kidxs[0], f's_load_dwordx2 s[12:13], s[0:1], 88\ns_mov_b32 s4, {X2:#x}')
        self.entry('down2_kernel', None, kidxs[1], 's_load_dwordx2 s[12:13], s[0:1], 72\ns_mov_b32 s4, 0')
        p(f'{Lb}:')
        self.common_start(256, Lx)
        p('''s_and_b32 s20, s2, 7
        s_lshl_b32 s20, s20, 2
        s_lshr_b32 s22, s2, 6
        s_add_u32 s20, s20, s22           ; tb
        s_bfe_u32 s21, s2, 0x30003        ; cb''')
        self.down_body()
        self.finish()
        p(f'{Lx}:\ns_endpgm')
        self.desc('down1_kernel', 104)
        self.desc('down2_kernel', 104)

    def build(self, extra_dummy=0):
        gu2 = 'gu2_kernel' if self.timing else 'gu1_kernel'
        L = [('prep_kernel', 168, 256, 9216 + 64), ('alpha1_kernel', 256, 256, 20480), ('beta1_kernel', 256, 256, 0),
             ('gu1_kernel', 256, 256, 163840), ('down1_kernel', 256, 256, 9 * 16384),
             ('alpha2_kernel', 256, 256, 20480), ('beta2_kernel', 256, 256, 0),
             (gu2, 256, 256, 163840), ('down2_kernel', 256, 256, 9 * 16384)]
        self.k_prep(0)
        self.k_alpha((1, 5))
        self.k_beta((2, 6))
        self.k_gu((3, 7))
        self.k_down((4, 8))
        if extra_dummy:
            self.entry('dummy_kernel', None, 9)
            self.p('s_endpgm')
            self.desc('dummy_kernel', 8)
            L += [('dummy_kernel', 256, 256, 0)] * extra_dummy
        head = '; FNet(FFT-factorised) + GLU network, generated by gen/gen.py\n'
        for n, g, b, lds in L:
            head += f'; @launch kernel={n} grid=({g},1,1) block=({b},1,1) lds={lds}\n'
        head += '.amdgcn_target "amdgcn-amd-amdhsa--gfx950"\n.text\n'
        body = self.p.render()
        tail = '.section .rodata,"a"\n'
        for n, v, s, acc in self.descs:
            acc = acc or (v + 3) // 4 * 4
            tail += f'''.p2align 6
.amdhsa_kernel {n}
  .amdhsa_next_free_vgpr {v}
  .amdhsa_next_free_sgpr {s}
  .amdhsa_accum_offset {acc}
  .amdhsa_group_segment_fixed_size 0
  .amdhsa_kernarg_size 96
  .amdhsa_user_sgpr_count 2
  .amdhsa_user_sgpr_kernarg_segment_ptr 1
  .amdhsa_system_sgpr_workgroup_id_x 1
.end_amdhsa_kernel
'''
        return head + body + tail


if __name__ == '__main__':
    import argparse
    ap = argparse.ArgumentParser()
    ap.add_argument('out')
    ap.add_argument('--timing', action='store_true')
    ap.add_argument('--dummy', type=int, default=0)
    a = ap.parse_args()
    g = Gen(timing=a.timing)
    s = g.build(a.dummy)
    open(a.out, 'w').write(s)
    print('written', a.out, len(s), 'bytes; nops inserted:', g.p.nnop)
```
